```python
import torch

def _softmax(x, axis=-1):
    return torch.softmax(x, dim=axis)
def _gelu(x):
    return torch.nn.functional.gelu(x, approximate="tanh")
def _silu(x):
    return torch.nn.functional.silu(x)
def _sigmoid(x):
    return torch.sigmoid(x)
def _layernorm(x, axis=-1, eps=1e-5):
    m = x.mean(dim=axis, keepdim=True)
    v = x.var(dim=axis, keepdim=True, unbiased=False)
    return (x - m) / torch.sqrt(v + eps)
def _scatter_add(tgt, idx, src, axis=0):
    return tgt.clone().index_add_(axis, idx, src)
def _segment_sum(src, seg, n):
    out = torch.zeros((n,) + src.shape[1:], dtype=src.dtype)
    return out.index_add_(0, seg, src)
def _pad(x, pw):
    flat = tuple(v for pair in reversed(pw) for v in pair)
    return torch.nn.functional.pad(x, flat)

kernel_name = 'standalone__grn__sampling'

def setup_inputs():

    _w = (lambda a: (lambda t: t.to(torch.bfloat16) if t.is_floating_point() else t)(torch.as_tensor(a)))
    B, S, D = 1024, 8, 640
    return {
        "x": _w((lambda *s: torch.randn(*s, dtype=torch.bfloat16) * 0.05)(B, S, D)),
        "g": _w((lambda *s: torch.randn(*s, dtype=torch.bfloat16) * 0.4)(D) * 0.1),
        "b": _w((lambda *s: torch.randn(*s, dtype=torch.bfloat16) * 0.1)(D) * 0.1),
    }

def reference(x, g, b):
    gx = torch.sqrt((x * x).sum(axis=-2, keepdims=True))
    nx = gx / (gx.mean(axis=-1, keepdims=True) + 1e-6)
    return g * (x * nx) + b + x
```

```python
import sys, re
def wrap(src, K=40):
    lines = src.split("\n")
    out = []
    launches = []
    body_start = None
    for i, l in enumerate(lines):
        s = l.strip()
        if s and not s.startswith(";"):
            body_start = i
            break
        m = re.match(r";\s*@launch\s+(kernel=\S+\s+)?(grid=.*)", s)
        if m:
            k = m.group(1) or "kernel=standalone__grn__sampling_kernel "
            launches.append(f"; @launch {k.strip()} {m.group(2)}")
    out.append("; @launch kernel=pre_kernel grid=(1,1,1) block=(64,1,1) lds=0")
    out += launches
    out.append("; @launch kernel=post_kernel grid=(1,1,1) block=(64,1,1) lds=0")
    body = "\n".join(lines[body_start:])
    extra_code = f"""
.text
.p2align 8
pre_kernel:
    s_load_dwordx2 s[4:5], s[0:1], 40
    s_cmp_ge_u32 s2, 1
    s_cbranch_scc1 L_pre_end
    s_waitcnt lgkmcnt(0)
    s_add_u32 s4, s4, 0x0ff00000
    s_addc_u32 s5, s5, 0
    s_memrealtime s[6:7]
    s_waitcnt lgkmcnt(0)
    v_mov_b32 v1, s6
    v_mov_b32 v2, 0
    global_store_dword v2, v1, s[4:5]
L_pre_end:
    s_endpgm
.p2align 8
post_kernel:
    s_memrealtime s[6:7]
    s_load_dwordx2 s[4:5], s[0:1], 40
    s_cmp_ge_u32 s2, 1
    s_cbranch_scc1 L_post_end
    s_waitcnt lgkmcnt(0)
    s_add_u32 s4, s4, 0x0ff00000
    s_addc_u32 s5, s5, 0
    v_mov_b32 v2, 0
    global_load_dword v1, v2, s[4:5] sc0 sc1
    s_waitcnt vmcnt(0)
    v_readfirstlane_b32 s8, v1
    s_nop 4
    s_sub_u32 s9, s6, s8
    s_min_u32 s9, s9, 5000
    s_mul_i32 s9, s9, {K}
L_post_spin:
    s_memrealtime s[10:11]
    s_waitcnt lgkmcnt(0)
    s_sub_u32 s12, s10, s6
    s_cmp_lt_u32 s12, s9
    s_cbranch_scc1 L_post_spin
L_post_end:
    s_endpgm
"""
    kd = ""
    for n in ("pre_kernel", "post_kernel"):
        kd += f"""
.section .rodata,"a"
.p2align 6
.amdhsa_kernel {n}
  .amdhsa_next_free_vgpr 8
  .amdhsa_next_free_sgpr 24
  .amdhsa_accum_offset 8
  .amdhsa_group_segment_fixed_size 0
  .amdhsa_kernarg_size 48
  .amdhsa_user_sgpr_count 2
  .amdhsa_user_sgpr_kernarg_segment_ptr 1
  .amdhsa_system_sgpr_workgroup_id_x 1
.end_amdhsa_kernel
"""
    return "\n".join(out) + "\n" + body + extra_code + kd
if __name__ == "__main__":
    K = 40
    args = sys.argv[1:]
    if args[0].startswith("-K"):
        K = int(args[0][2:]); args = args[1:]
    for f in args:
        o = f.replace("v/", "w/")
        if K != 40: o = o[:-2] + f"_K{K}.s"
        open(o, "w").write(wrap(open(f).read(), K))
        print(o)
```

```python
import sys, re
from wrap import wrap
POST = """
.text
.p2align 8
post_kernel:
    s_memrealtime s[6:7]
    s_load_dwordx2 s[4:5], s[0:1], 40
    s_cmp_ge_u32 s2, 1
    s_cbranch_scc1 L_post_end
    s_waitcnt lgkmcnt(0)
    s_add_u32 s4, s4, 0x0ff00000
    s_addc_u32 s5, s5, 0
    v_mov_b32 v2, 0
    global_load_dword v1, v2, s[4:5] sc0 sc1
    s_waitcnt vmcnt(0)
    v_readfirstlane_b32 s8, v1
    s_nop 4
    s_sub_u32 s9, s6, s8
    s_min_u32 s9, s9, 5000
    s_mul_i32 s9, s9, @K@
L_post_spin:
    s_memrealtime s[10:11]
    s_waitcnt lgkmcnt(0)
    s_sub_u32 s12, s10, s6
    s_cmp_lt_u32 s12, s9
    s_cbranch_scc1 L_post_spin
L_post_end:
    s_endpgm
.section .rodata,"a"
.p2align 6
.amdhsa_kernel post_kernel
  .amdhsa_next_free_vgpr 8
  .amdhsa_next_free_sgpr 24
  .amdhsa_accum_offset 8
  .amdhsa_group_segment_fixed_size 0
  .amdhsa_kernarg_size 48
  .amdhsa_user_sgpr_count 2
  .amdhsa_user_sgpr_kernarg_segment_ptr 1
  .amdhsa_system_sgpr_workgroup_id_x 1
.end_amdhsa_kernel
"""
def wrap_first(src, K=40):
    lines = src.split("\n")
    out = []
    for i, l in enumerate(lines):
        s = l.strip()
        if s and not s.startswith(";"):
            body_start = i
            break
        m = re.match(r";\s*@launch\s+(kernel=\S+\s+)?(grid=.*)", s)
        if m:
            k = m.group(1) or "kernel=standalone__grn__sampling_kernel "
            out.append(f"; @launch {k.strip()} {m.group(2)}")
    out.append("; @launch kernel=post_kernel grid=(1,1,1) block=(64,1,1) lds=0")
    body = "\n".join(lines[body_start:])
    lab = "standalone__grn__sampling_kernel:\n"
    assert body.count(lab) == 1
    body = body.replace(lab, lab + "    s_memrealtime s[70:71]\n    s_load_dwordx2 s[72:73], s[0:1], 40\n    s_mov_b32 s74, s2\n    s_nop 0\n")
    endtag = "L_end:\n    s_endpgm\n"
    assert body.count(endtag) == 1
    body = body.replace(endtag, """L_end:
    s_cmp_lg_u32 s74, 0
    s_cbranch_scc1 L_end2
    s_waitcnt lgkmcnt(0)
    s_mov_b64 exec, 1
    s_add_u32 s72, s72, 0x0ff00000
    s_addc_u32 s73, s73, 0
    v_mov_b32 v1, s70
    v_mov_b32 v0, 0
    global_store_dword v0, v1, s[72:73]
L_end2:
    s_endpgm
""")
    body = re.sub(r"\.amdhsa_next_free_sgpr \d+", ".amdhsa_next_free_sgpr 76", body)
    return "\n".join(out) + "\n" + body + POST.replace("@K@", str(K))
if __name__ == "__main__":
    K = 40
    args = sys.argv[1:]
    if args[0].startswith("-K"):
        K = int(args[0][2:]); args = args[1:]
    for f in args:
        o = f.replace("v/", "w/f_")
        if K != 40: o = o[:-2] + f"_K{K}.s"
        open(o, "w").write(wrap_first(open(f).read(), K))
        print(o)
```

```python
import sys, re
def post(nw, j, op, K, rel=0):
    per = nw // 64
    o = []
    a = o.append
    a(".text\n.p2align 8\npost_kernel:")
    a("    s_memrealtime s[6:7]")
    a("    s_load_dwordx2 s[4:5], s[0:1], 40")
    a("    s_cmp_ge_u32 s2, 1")
    a("    s_cbranch_scc1 L_post_end")
    a("    v_lshlrev_b32 v1, 5, v0")
    a("    s_waitcnt lgkmcnt(0)")
    a("    s_sub_u32 s8, s6, 100000      ; base")
    a("    v_mov_b32 v2, -1              ; min start")
    a(f"    v_mov_b32 v3, {'-1' if op == 'min' else '0'}")
    a("    s_mov_b32 s20, 0")
    a("L_post_loop:")
    a("    global_load_dword v4, v1, s[4:5] sc0 sc1")
    a(f"    global_load_dword v5, v1, s[4:5] offset:{4*j} sc0 sc1")
    a(f"    global_load_dword v6, v1, s[4:5] offset:{4*rel} sc0 sc1")
    a("    s_waitcnt vmcnt(0)")
    a("    v_subrev_u32 v4, s8, v4")
    if rel >= 0 and rel != 0:
        a("    v_sub_u32 v5, v5, v6")
    else:
        a("    v_subrev_u32 v5, s8, v5")
    a("    v_min_u32 v2, v2, v4")
    a({"min": "    v_min_u32 v3, v3, v5", "max": "    v_max_u32 v3, v3, v5", "mean": "    v_add_u32 v3, v3, v5"}[op])
    a("    v_add_u32 v1, 2048, v1")
    a("    s_add_u32 s20, s20, 1")
    a(f"    s_cmp_lt_u32 s20, {per}")
    a("    s_cbranch_scc1 L_post_loop")
    a("    s_nop 4")
    a("    s_mov_b32 s14, -1")
    a(f"    s_mov_b32 s15, {'-1' if op == 'min' else '0'}")
    for l in range(64):
        a(f"    v_readlane_b32 s16, v2, {l}")
        a(f"    v_readlane_b32 s17, v3, {l}")
        a("    s_nop 1")
        a("    s_min_u32 s14, s14, s16")
        a({"min": "    s_min_u32 s15, s15, s17", "max": "    s_max_u32 s15, s15, s17", "mean": "    s_add_u32 s15, s15, s17"}[op])
    if rel != 0:
        a("    s_mov_b32 s14, 0")
    if op == "mean":
        a(f"    s_mul_i32 s14, s14, {nw}")
        a("    s_sub_u32 s9, s15, s14")
        a(f"    s_min_u32 s9, s9, {3000*nw}")
        a(f"    s_mul_i32 s9, s9, {K}")
        a(f"    s_lshr_b32 s9, s9, {nw.bit_length()-1}")
    else:
        a("    s_sub_u32 s9, s15, s14")
        a("    s_min_u32 s9, s9, 3000")
        a(f"    s_mul_i32 s9, s9, {K}")
    a("L_post_spin:")
    a("    s_memrealtime s[10:11]")
    a("    s_waitcnt lgkmcnt(0)")
    a("    s_sub_u32 s12, s10, s6")
    a("    s_cmp_lt_u32 s12, s9")
    a("    s_cbranch_scc1 L_post_spin")
    a("L_post_end:")
    a("    s_endpgm")
    a(""".section .rodata,"a"
.p2align 6
.amdhsa_kernel post_kernel
  .amdhsa_next_free_vgpr 8
  .amdhsa_next_free_sgpr 24
  .amdhsa_accum_offset 8
  .amdhsa_group_segment_fixed_size 0
  .amdhsa_kernarg_size 48
  .amdhsa_user_sgpr_count 2
  .amdhsa_user_sgpr_kernarg_segment_ptr 1
  .amdhsa_system_sgpr_workgroup_id_x 1
.end_amdhsa_kernel""")
    return "\n".join(o) + "\n"
def wrap(src, j, op, K=100, rel=0):
    lines = src.split("\n")
    out = []
    for i, l in enumerate(lines):
        s = l.strip()
        if s and not s.startswith(";"):
            body_start = i
            break
        m = re.match(r";\s*@launch\s+(kernel=\S+\s+)?(grid=\((\d+),1,1\) block=\((\d+),1,1\).*)", s)
        if m:
            k = m.group(1) or "kernel=standalone__grn__sampling_kernel "
            out.append(f"; @launch {k.strip()} {m.group(2)}")
            nw = int(m.group(3)) * int(m.group(4)) // 64
    out.append("; @launch kernel=post_kernel grid=(1,1,1) block=(64,1,1) lds=0")
    return "\n".join(out) + "\n" + "\n".join(lines[body_start:]) + post(nw, j, op, K, rel)
if __name__ == "__main__":
    f = sys.argv[1]
    for spec in sys.argv[2:]:
        p = spec.split(":")
        j, op = int(p[0]), p[1]
        rel = int(p[2]) if len(p) > 2 else 0
        o = f.replace("v/", "w/s_")[:-2] + f"_{j}{op}" + (f"_r{rel}" if rel else "") + ".s"
        open(o, "w").write(wrap(open(f).read(), j, op, 100, rel))
        print(o)
```

```python
import sys, argparse

HDR = """; Kernarg layout for this problem (48 bytes, ptrs only, base s[0:1]):
"""

def gen(wpw=4, ld="", st="", gb="last", spf=0, outpf=0, vgprs=None, lds=0, stamp=False, gbpos=2, hop=0, align=8, delay=0):
    nwg = 1024 // wpw
    o = []
    a = o.append
    a(HDR.rstrip())
    a(f"; @launch grid=({nwg},1,1) block=({64*wpw},1,1) lds={lds}")
    a('.amdgcn_target "amdgcn-amd-amdhsa--gfx950"')
    a(".text")
    a(".globl standalone__grn__sampling_kernel")
    a(f".p2align {align}")
    a(".type standalone__grn__sampling_kernel,@function")
    a("standalone__grn__sampling_kernel:")
    if stamp:
        a("    s_memrealtime s[24:25]")
        a("    s_load_dwordx2 s[22:23], s[0:1], 40")
    a("    s_load_dwordx8 s[4:11], s[0:1], 0          ; x, g, b, out")
    a(f"    s_cmp_ge_u32 s2, {nwg}")
    a("    s_cbranch_scc1 L_end")
    a(f"    s_mul_i32 s3, s2, {10240*wpw}")
    a("    v_and_b32 v4, 63, v0                       ; lane")
    if wpw > 1:
        a("    v_lshrrev_b32 v1, 6, v0")
        a("    v_mul_u32_u24 v1, 10240, v1")
        a("    v_add_u32 v6, s3, v1")
    else:
        a("    v_mov_b32 v6, s3")
    a("    v_lshrrev_b32 v3, 4, v4                    ; q = lane>>4")
    a("    v_and_b32 v5, 15, v0")
    a("    v_lshlrev_b32 v4, 4, v4                    ; lane*16")
    a("    v_lshlrev_b32 v5, 4, v5                    ; (lane&15)*16")
    a("    v_mul_u32_u24 v3, 1280, v3")
    a("    v_add_u32 v1, v6, v4                       ; rows 0..3")
    a("    v_add_u32 v5, 1024, v5")
    a("    v_add_u32 v2, 5120, v1                     ; rows 4..7")
    a("    v_add3_u32 v3, v3, v5, v6")
    a("    v_add_u32 v3, 2560, v3")
    if hop:
        a("    s_cmp_eq_u32 0, 0")
        a("    s_branch L_hop1")
        a("L_back1:")
    a("    s_waitcnt lgkmcnt(0)")
    if stamp: a("    s_memrealtime s[26:27]")
    T = [8, 12]
    R = [16 + 4*i for i in range(8)]
    TL = [48, 52]
    RL = [56 + 4*i for i in range(8)]
    GM, GT, BM, BT = 88, 92, 96, 100
    GML, GTL, BML, BTL = 104, 108, 112, 116
    AH, AL = 120, 124
    CH, CL = 128, 132
    M = 136
    def rng(b, n): return f"v[{b}:{b+n-1}]"
    def gbloads():
        a(f"    global_load_dwordx4 {rng(GM,4)}, v4, s[6:7]")
        a(f"    global_load_dwordx4 {rng(BM,4)}, v4, s[8:9]")
        a(f"    global_load_dwordx4 {rng(GT,4)}, v5, s[6:7]")
        a(f"    global_load_dwordx4 {rng(BT,4)}, v5, s[8:9]")
    if spf:
        for k in range(0, 1280, spf):
            a(f"    s_load_dword s40, s[6:7], {k}")
            a(f"    s_load_dword s41, s[8:9], {k}")
    q = []
    if gb == "first":
        gbloads(); q += ["gb"]*4
    a(f"    global_load_dwordx4 {rng(T[0],4)}, v3, s[4:5] offset:-2560 {ld}"); q.append("T0")
    a(f"    global_load_dwordx4 {rng(T[1],4)}, v3, s[4:5] offset:2560 {ld}"); q.append("T1")
    for r in range(8):
        a(f"    global_load_dwordx4 {rng(R[r],4)}, v{1 + r//4}, s[4:5] offset:{1280*(r%4)} {ld}"); q.append(f"R{r}")
    if gb == "last":
        gbloads(); q += ["gb"]*4
    if outpf:
        a(f"    global_load_dword v143, v1, s[10:11]"); q.append("pf")
    if hop >= 2:
        a("    s_branch L_hop2")
        a("L_back2:")
    if hop:
        a("    s_cmp_lg_u32 0, 0                          ; SCC=0 : main pass")
    a("    s_mov_b32 s12, 0xffff0000")
    a("    s_mov_b32 s13, 0x3acccccd                  ; 1/640")
    a("    v_mov_b32 v7, 0x358637bd                   ; 1e-6")
    if stamp: a("    s_memrealtime s[38:39]")
    def wait(tag):
        idx = max(i for i, t in enumerate(q) if t == tag)
        a(f"    s_waitcnt vmcnt({len(q) - 1 - idx})")
    def unpack(X, L):
        for i in range(4):
            a(f"    v_lshlrev_b32 v{L+i}, 16, v{X+i}")
        for i in range(4):
            a(f"    v_and_b32 v{X+i}, s12, v{X+i}")
    def sq(X, L, H_, L_, first):
        for (src, acc) in ((L, L_), (L+2, L_+2), (X, H_), (X+2, H_+2)):
            if first:
                a(f"    v_pk_mul_f32 {rng(acc,2)}, {rng(src,2)}, {rng(src,2)}")
            else:
                a(f"    v_pk_fma_f32 {rng(acc,2)}, {rng(src,2)}, {rng(src,2)}, {rng(acc,2)}")
    gb_unpacked = False
    if gb == "first":
        wait("gb")
        if stamp: a("    s_memrealtime s[28:29]")
        for (X, L) in ((GM, GML), (GT, GTL), (BM, BML), (BT, BTL)):
            unpack(X, L)
        gb_unpacked = True
    step = 0
    def maybe_gb():
        nonlocal step
        if gb == "mid" and step == gbpos:
            gbloads(); q.extend(["gb"]*4)
        step += 1
    for j in range(2):
        wait(f"T{j}")
        if stamp and j == 0 and gb != "first": a("    s_memrealtime s[28:29]")
        maybe_gb()
        unpack(T[j], TL[j])
        sq(T[j], TL[j], CH, CL, j == 0)
    a("    s_nop 1")
    for i in range(4):
        a(f"    v_permlane32_swap_b32 v{CH+i}, v{CL+i}")
    a(f"    v_pk_add_f32 {rng(CH,2)}, {rng(CH,2)}, {rng(CL,2)}")
    a(f"    v_pk_add_f32 {rng(CH+2,2)}, {rng(CH+2,2)}, {rng(CL+2,2)}")
    a("    s_nop 1")
    a(f"    v_permlane16_swap_b32 v{CH}, v{CH+2}")
    a(f"    v_permlane16_swap_b32 v{CH+1}, v{CH+3}")
    a(f"    v_pk_add_f32 {rng(CH,2)}, {rng(CH,2)}, {rng(CH+2,2)}")
    a(f"    v_sqrt_f32 v{CH}, v{CH}")
    a(f"    v_sqrt_f32 v{CH+1}, v{CH+1}")
    a("    s_nop 0")
    a(f"    v_add_f32 v{M}, v{CH}, v{CH+1}")
    a(f"    v_mov_b32 v{CH+2}, v{CH}")
    a(f"    v_mov_b32 v{CH+3}, v{CH+1}")
    a("    s_nop 1")
    a(f"    v_permlane16_swap_b32 v{CH}, v{CH+2}")
    a(f"    v_permlane16_swap_b32 v{CH+1}, v{CH+3}")
    for i in range(4):
        a(f"    v_mov_b32 v{CL+i}, v{CH+i}")
    a("    s_nop 1")
    for i in range(4):
        a(f"    v_permlane32_swap_b32 v{CH+i}, v{CL+i}")
    if gb_unpacked:
        for (g, acc) in ((GTL, CL), (GTL+2, CL+2), (GT, CH), (GT+2, CH+2)):
            a(f"    v_pk_mul_f32 {rng(acc,2)}, {rng(acc,2)}, {rng(g,2)}")
    for r in range(8):
        wait(f"R{r}")
        if stamp and r == 7: a("    s_memrealtime s[30:31]")
        maybe_gb()
        unpack(R[r], RL[r])
        sq(R[r], RL[r], AH, AL, r == 0)
    for i in range(4):
        a(f"    v_sqrt_f32 v{AL+i}, v{AL+i}")
    for i in range(4):
        a(f"    v_sqrt_f32 v{AH+i}, v{AH+i}")
    a(f"    v_pk_add_f32 {rng(M+2,2)}, {rng(AL,2)}, {rng(AL+2,2)}")
    a(f"    v_pk_add_f32 {rng(M+4,2)}, {rng(AH,2)}, {rng(AH+2,2)}")
    a(f"    v_pk_add_f32 {rng(M+2,2)}, {rng(M+2,2)}, {rng(M+4,2)}")
    a(f"    v_add_f32 v{M}, v{M}, v{M+2}")
    a(f"    v_add_f32 v{M}, v{M}, v{M+3}")
    fill = []
    late = []
    if gb_unpacked:
        for (g, acc) in ((GML, AL), (GML+2, AL+2), (GM, AH), (GM+2, AH+2)):
            fill.append(f"    v_pk_mul_f32 {rng(acc,2)}, {rng(acc,2)}, {rng(g,2)}")
    else:
        for (X, L) in ((GM, GML), (GT, GTL)):
            for i in range(4):
                late.append(f"    v_lshlrev_b32 v{L+i}, 16, v{X+i}")
            for i in range(4):
                late.append(f"    v_and_b32 v{X+i}, s12, v{X+i}")
        for (g, acc) in ((GML, AL), (GML+2, AL+2), (GM, AH), (GM+2, AH+2), (GTL, CL), (GTL+2, CL+2), (GT, CH), (GT+2, CH+2)):
            late.append(f"    v_pk_mul_f32 {rng(acc,2)}, {rng(acc,2)}, {rng(g,2)}")
        for (X, L) in ((BM, BML), (BT, BTL)):
            for i in range(4):
                late.append(f"    v_lshlrev_b32 v{L+i}, 16, v{X+i}")
            for i in range(4):
                late.append(f"    v_and_b32 v{X+i}, s12, v{X+i}")
    def F(k):
        left = k
        while left and fill:
            a(fill.pop(0)); left -= 1
        if left: a(f"    s_nop {left-1}")
    for dpp in ("quad_perm:[1,0,3,2]", "quad_perm:[2,3,0,1]", "row_half_mirror", "row_mirror"):
        F(2)
        a(f"    v_add_f32_dpp v{M}, v{M}, v{M} {dpp} row_mask:0xf bank_mask:0xf")
    a(f"    v_mov_b32 v{M+1}, v{M}")
    F(2)
    a(f"    v_permlane16_swap_b32 v{M}, v{M+1}")
    a(f"    v_add_f32 v{M}, v{M}, v{M+1}")
    a(f"    v_mov_b32 v{M+1}, v{M}")
    F(2)
    a(f"    v_permlane32_swap_b32 v{M}, v{M+1}")
    a(f"    v_add_f32 v{M}, v{M}, v{M+1}")
    a(f"    v_fma_f32 v{M}, v{M}, s13, v7")
    a(f"    v_rcp_f32 v{M}, v{M}")
    for l in fill: a(l)
    if late:
        wait("gb")
        if stamp: a("    s_memrealtime s[32:33]")
        for l in late: a(l)
    else:
        if stamp: a("    s_memrealtime s[32:33]")
    if delay:
        a("L_delay:")
        a("    s_memrealtime s[32:33]")
        a("    s_waitcnt lgkmcnt(0)")
        a("    s_sub_u32 s42, s32, s24")
        a(f"    s_cmp_lt_u32 s42, {delay}")
        a("    s_cbranch_scc1 L_delay")
    a("    s_nop 0")
    for acc in (AL, AL+2, AH, AH+2, CL, CL+2, CH, CH+2):
        a(f"    v_pk_fma_f32 {rng(acc,2)}, {rng(acc,2)}, {rng(M,2)}, 1.0 op_sel_hi:[1,0,0]")
    def outrow(X, L, KH, KL, BH, BL):
        a(f"    v_pk_fma_f32 {rng(L,2)}, {rng(L,2)}, {rng(KL,2)}, {rng(BL,2)}")
        a(f"    v_pk_fma_f32 {rng(X,2)}, {rng(X,2)}, {rng(KH,2)}, {rng(BH,2)}")
        a(f"    v_pk_fma_f32 {rng(L+2,2)}, {rng(L+2,2)}, {rng(KL+2,2)}, {rng(BL+2,2)}")
        a(f"    v_pk_fma_f32 {rng(X+2,2)}, {rng(X+2,2)}, {rng(KH+2,2)}, {rng(BH+2,2)}")
        for i in range(4):
            a(f"    v_cvt_pk_bf16_f32 v{X+i}, v{L+i}, v{X+i}")
    for r in range(8):
        outrow(R[r], RL[r], AH, AL, BM, BML)
        a(f"    global_store_dwordx4 v{1 + r//4}, {rng(R[r],4)}, s[10:11] offset:{1280*(r%4)} {st}")
    for j in range(2):
        outrow(T[j], TL[j], CH, CL, BT, BTL)
        a(f"    global_store_dwordx4 v3, {rng(T[j],4)}, s[10:11] offset:{-2560 if j == 0 else 2560} {st}")
    if stamp:
        a("    s_waitcnt vmcnt(0)")
        a("    s_memrealtime s[34:35]")
        a("    s_getreg_b32 s36, hwreg(HW_REG_XCC_ID)")
        a("    s_getreg_b32 s37, hwreg(HW_REG_HW_ID)")
        a("    s_lshl_b32 s36, s36, 28")
        a("    s_and_b32 s37, s37, 0x0fffffff")
        a("    s_or_b32 s36, s36, s37")
        a("    s_waitcnt lgkmcnt(0)")
        a("    v_lshrrev_b32 v1, 6, v0")
        a(f"    s_mul_i32 s3, s2, {wpw}")
        a("    v_add_u32 v1, s3, v1")
        a("    v_lshlrev_b32 v1, 5, v1")
        for i, sr in enumerate((24, 26, 38, 28, 30, 32, 34, 36)):
            a(f"    v_mov_b32 v{8+i}, s{sr}")
        a("    global_store_dwordx4 v1, v[8:11], s[22:23]")
        a("    global_store_dwordx4 v1, v[12:15], s[22:23] offset:16")
    a("L_end:")
    a("    s_endpgm")
    nv = vgprs or 144
    acc_off = min(256, (nv + 3)//4*4)
    a('.section .rodata,"a"')
    a(".p2align 6")
    a(".amdhsa_kernel standalone__grn__sampling_kernel")
    a(f"  .amdhsa_next_free_vgpr {nv}")
    a("  .amdhsa_next_free_sgpr 48")
    a(f"  .amdhsa_accum_offset {acc_off}")
    a("  .amdhsa_group_segment_fixed_size 0")
    a("  .amdhsa_kernarg_size 48")
    a("  .amdhsa_user_sgpr_count 2")
    a("  .amdhsa_user_sgpr_kernarg_segment_ptr 1")
    a("  .amdhsa_system_sgpr_workgroup_id_x 1")
    a("  .amdhsa_float_denorm_mode_32 3")
    a(".end_amdhsa_kernel")
    txt = "\n".join(l.rstrip() for l in o) + "\n"
    if hop:
        txt = place_hops(txt, hop)
    return txt

import subprocess, re, os, tempfile
def insn_offsets(txt):
    lines = txt.split("\n")
    tagged = []
    start = lines.index("standalone__grn__sampling_kernel:")
    end = next(i for i, l in enumerate(lines) if l.startswith(".section .rodata"))
    out = []
    for i, l in enumerate(lines):
        if start < i < end and l.startswith("    "):
            out.append(f"__o{i}:")
        out.append(l)
    src = "\n".join(out)
    for h in (1, 2, 3):
        if f"L_hop{h}:" not in src and f"L_hop{h}" in src:
            src = src.replace("L_end:", f"L_hop{h}:\nL_end:")
    with tempfile.TemporaryDirectory() as d:
        open(d + "/a.s", "w").write(src)
        subprocess.run(["clang", "-x", "assembler", "-target", "amdgcn-amd-amdhsa", "-mcpu=gfx950", "-c", d + "/a.s", "-o", d + "/a.o"], check=True)
        r = subprocess.run(["llvm-readelf", "-s", "-W", d + "/a.o"], capture_output=True, text=True).stdout
    sym = {}
    for l in r.splitlines():
        p = l.split()
        if len(p) == 8 and p[0].endswith(":") and p[0][:-1].isdigit(): sym[p[7]] = int(p[1], 16)
    base = sym["standalone__grn__sampling_kernel"]
    return sorted((int(k[3:]), v - base) for k, v in sym.items() if k.startswith("__o"))

def place_hops(txt, hop):
    for h in range(1, hop + 1):
        offs = insn_offsets(txt)
        lo = 16 * 64 * h
        lines = txt.split("\n")
        last = max(i for i, l in enumerate(lines) if "global_store_dwordx4" in l and "s[10:11]" in l)
        first = next(i for i, l in enumerate(lines) if "SCC=0 : main pass" in l)
        for l in lines[first+1:last]:
            if "s42" in l: continue
            assert not re.match(r"\s+s_(add|sub|lshl|lshr|and|or|xor|cmp|min|max|not|bf|ashr|abs)", l), l
        cand = [i for i, off in offs if lo <= off < lo + 56 and first < i <= last]
        i = cand[0] if cand else last
        lines.insert(i, f"L_hop{h}:\n    s_cbranch_scc1 L_back{h}")
        txt = "\n".join(lines)
    return txt

if __name__ == "__main__":
    p = argparse.ArgumentParser()
    p.add_argument("--wpw", type=int, default=4)
    p.add_argument("--ld", default="")
    p.add_argument("--st", default="")
    p.add_argument("--gb", default="last")
    p.add_argument("--gbpos", type=int, default=2)
    p.add_argument("--spf", type=int, default=0)
    p.add_argument("--outpf", type=int, default=0)
    p.add_argument("--vgprs", type=int, default=None)
    p.add_argument("--lds", type=int, default=0)
    p.add_argument("--stamp", action="store_true")
    p.add_argument("--hop", type=int, default=0)
    p.add_argument("--align", type=int, default=8)
    p.add_argument("--delay", type=int, default=0)
    p.add_argument("-o", default="-")
    x = p.parse_args()
    s = gen(x.wpw, x.ld, x.st, x.gb, x.spf, x.outpf, x.vgprs, x.lds, x.stamp, x.gbpos, x.hop, x.align, x.delay)
    if x.o == "-": sys.stdout.write(s)
    else: open(x.o, "w").write(s)
```

```python
import sys
from gen2 import place_hops

HDR = """; Kernarg layout for this problem (48 bytes, ptrs only, base s[0:1]):
; @launch grid=(256,1,1) block=(256,1,1) lds=0
;
; kernel before the data traffic saturates memory."""

o = []
a = o.append
a(HDR)
a('.amdgcn_target "amdgcn-amd-amdhsa--gfx950"')
a(".text")
a(".globl standalone__grn__sampling_kernel")
a(".p2align 12")
a(".p2align 8")
a(".type standalone__grn__sampling_kernel,@function")
a("standalone__grn__sampling_kernel:")
a("    s_load_dwordx8 s[4:11], s[0:1], 0          ; s[4:5]=x s[6:7]=g s[8:9]=b s[10:11]=out")
a("    s_cmp_ge_u32 s2, 256")
a("    s_cbranch_scc1 L_end")
a("    s_mul_i32 s3, s2, 40960")
a("    v_and_b32 v4, 63, v0                       ; lane")
a("    v_lshrrev_b32 v1, 6, v0")
a("    v_mul_u32_u24 v1, 10240, v1")
a("    v_add_u32 v6, s3, v1")
a("    v_lshrrev_b32 v3, 4, v4                    ; lane>>4")
a("    v_and_b32 v5, 15, v0")
a("    v_lshlrev_b32 v4, 4, v4")
a("    v_lshlrev_b32 v5, 4, v5")
a("    v_mul_u32_u24 v3, 1280, v3")
a("    v_add_u32 v1, v6, v4")
a("    v_add_u32 v5, 1024, v5")
a("    v_add_u32 v2, 5120, v1")
a("    v_add3_u32 v3, v3, v5, v6")
a("    v_add_u32 v3, 2560, v3")
a("    s_cmp_eq_u32 0, 0")
a("    s_branch L_hop1")
a("L_back1:")
a("    s_waitcnt lgkmcnt(0)")
T = [8, 12]; R = [16 + 4*i for i in range(8)]
TL = [48, 52]; RL = [56 + 4*i for i in range(8)]
P = {"GM": (88, 104), "GT": (92, 108), "BM": (96, 112), "BT": (100, 116)}
AH, AL, CH, CL, M = 120, 124, 128, 132, 136
def rng(b, n): return f"v[{b}:{b+n-1}]"
def pl(n): return f"    global_load_dwordx4 {rng(P[n][0],4)}, {'v4' if n[1] == 'M' else 'v5'}, {'s[6:7]' if n[0] == 'G' else 's[8:9]'}"
q = []
def ld(tag, s, c=""):
    a(f"{s:<62}; {c}" if c else s); q.append(tag)
ld("T0", f"    global_load_dwordx4 {rng(T[0],4)}, v3, s[4:5] offset:-2560 nt", "T0")
ld("gb", pl("GM"), "g main"); ld("gb", pl("GT"), "g tail"); ld("gb", pl("BT"), "b tail")
ld("T1", f"    global_load_dwordx4 {rng(T[1],4)}, v3, s[4:5] offset:2560 nt", "T1")
for r in range(8):
    ld(f"R{r}", f"    global_load_dwordx4 {rng(R[r],4)}, v{1 + r//4}, s[4:5] offset:{1280*(r%4)} nt", f"R{r}")
a("    s_branch L_hop2")
a("L_back2:")
a("    s_cmp_lg_u32 0, 0")
a("    s_mov_b32 s12, 0xffff0000")
a("    s_mov_b32 s13, 0x3acccccd                  ; 1/640")
a("    v_mov_b32 v7, 0x358637bd                   ; 1e-6")
def wait(tag):
    idx = max(i for i, t in enumerate(q) if t == tag)
    a(f"    s_waitcnt vmcnt({len(q) - 1 - idx})")
def unpack(X, L):
    for i in range(4): a(f"    v_lshlrev_b32 v{L+i}, 16, v{X+i}")
    for i in range(4): a(f"    v_and_b32 v{X+i}, s12, v{X+i}")
def sq(X, L, H_, L_, first):
    for (src, acc) in ((L, L_), (L+2, L_+2), (X, H_), (X+2, H_+2)):
        if first: a(f"    v_pk_mul_f32 {rng(acc,2)}, {rng(src,2)}, {rng(src,2)}")
        else: a(f"    v_pk_fma_f32 {rng(acc,2)}, {rng(src,2)}, {rng(src,2)}, {rng(acc,2)}")
wait("T0"); unpack(T[0], TL[0]); sq(T[0], TL[0], CH, CL, True)
wait("gb")
for n in ("GM", "GT", "BT"): unpack(*P[n])
wait("T1"); unpack(T[1], TL[1]); sq(T[1], TL[1], CH, CL, False)
a("    s_nop 1")
for i in range(4): a(f"    v_permlane32_swap_b32 v{CH+i}, v{CL+i}")
a(f"    v_pk_add_f32 {rng(CH,2)}, {rng(CH,2)}, {rng(CL,2)}")
a(f"    v_pk_add_f32 {rng(CH+2,2)}, {rng(CH+2,2)}, {rng(CL+2,2)}")
a("    s_nop 1")
a(f"    v_permlane16_swap_b32 v{CH}, v{CH+2}")
a(f"    v_permlane16_swap_b32 v{CH+1}, v{CH+3}")
a(f"    v_pk_add_f32 {rng(CH,2)}, {rng(CH,2)}, {rng(CH+2,2)}")
a(f"    v_sqrt_f32 v{CH}, v{CH}")
a(f"    v_sqrt_f32 v{CH+1}, v{CH+1}")
a("    s_nop 0")
a(f"    v_add_f32 v{M}, v{CH}, v{CH+1}")
a(f"    v_mov_b32 v{CH+2}, v{CH}")
a(f"    v_mov_b32 v{CH+3}, v{CH+1}")
a("    s_nop 1")
a(f"    v_permlane16_swap_b32 v{CH}, v{CH+2}")
a(f"    v_permlane16_swap_b32 v{CH+1}, v{CH+3}")
for i in range(4): a(f"    v_mov_b32 v{CL+i}, v{CH+i}")
a("    s_nop 1")
for i in range(4): a(f"    v_permlane32_swap_b32 v{CH+i}, v{CL+i}")
for r in range(8):
    wait(f"R{r}")
    if r == 3: ld("BM", pl("BM"), "b main, queued behind every x load of this CU")
    unpack(R[r], RL[r]); sq(R[r], RL[r], AH, AL, r == 0)
for i in range(4): a(f"    v_sqrt_f32 v{AL+i}, v{AL+i}")
for i in range(4): a(f"    v_sqrt_f32 v{AH+i}, v{AH+i}")
a(f"    v_pk_add_f32 {rng(M+2,2)}, {rng(AL,2)}, {rng(AL+2,2)}")
a(f"    v_pk_add_f32 {rng(M+4,2)}, {rng(AH,2)}, {rng(AH+2,2)}")
a(f"    v_pk_add_f32 {rng(M+2,2)}, {rng(M+2,2)}, {rng(M+4,2)}")
a(f"    v_add_f32 v{M}, v{M}, v{M+2}")
a(f"    v_add_f32 v{M}, v{M}, v{M+3}")
fill = []
for n, H_, L_ in (("GM", AH, AL), ("GT", CH, CL)):
    X, L = P[n]
    fill += [f"    v_pk_mul_f32 {rng(acc,2)}, {rng(acc,2)}, {rng(g,2)}" for (g, acc) in ((L, L_), (L+2, L_+2), (X, H_), (X+2, H_+2))]
for dpp in ("quad_perm:[1,0,3,2]", "quad_perm:[2,3,0,1]", "row_half_mirror", "row_mirror"):
    a(fill.pop(0)); a(fill.pop(0))
    a(f"    v_add_f32_dpp v{M}, v{M}, v{M} {dpp} row_mask:0xf bank_mask:0xf")
a(f"    v_mov_b32 v{M+1}, v{M}")
a("    s_nop 1")
a(f"    v_permlane16_swap_b32 v{M}, v{M+1}")
a(f"    v_add_f32 v{M}, v{M}, v{M+1}")
a(f"    v_mov_b32 v{M+1}, v{M}")
a("    s_nop 1")
a(f"    v_permlane32_swap_b32 v{M}, v{M+1}")
a(f"    v_add_f32 v{M}, v{M}, v{M+1}")
a(f"    v_fma_f32 v{M}, v{M}, s13, v7               ; mean + 1e-6")
a(f"    v_rcp_f32 v{M}, v{M}")
a("    s_nop 0")
for H_, L_ in ((AH, AL), (CH, CL)):
    for acc in (L_, L_+2, H_, H_+2):
        a(f"    v_pk_fma_f32 {rng(acc,2)}, {rng(acc,2)}, {rng(M,2)}, 1.0 op_sel_hi:[1,0,0]")
a("    s_waitcnt vmcnt(0)")
unpack(*P["BM"])
def outrow(X, L, KH, KL, B):
    BH, BL = P[B]
    a(f"    v_pk_fma_f32 {rng(L,2)}, {rng(L,2)}, {rng(KL,2)}, {rng(BL,2)}")
    a(f"    v_pk_fma_f32 {rng(X,2)}, {rng(X,2)}, {rng(KH,2)}, {rng(BH,2)}")
    a(f"    v_pk_fma_f32 {rng(L+2,2)}, {rng(L+2,2)}, {rng(KL+2,2)}, {rng(BL+2,2)}")
    a(f"    v_pk_fma_f32 {rng(X+2,2)}, {rng(X+2,2)}, {rng(KH+2,2)}, {rng(BH+2,2)}")
    for i in range(4): a(f"    v_cvt_pk_bf16_f32 v{X+i}, v{L+i}, v{X+i}")
for r in range(8):
    outrow(R[r], RL[r], AH, AL, "BM")
    a(f"    global_store_dwordx4 v{1 + r//4}, {rng(R[r],4)}, s[10:11] offset:{1280*(r%4)} nt")
for j in range(2):
    outrow(T[j], TL[j], CH, CL, "BT")
    a(f"    global_store_dwordx4 v3, {rng(T[j],4)}, s[10:11] offset:{-2560 if j == 0 else 2560} nt")
a("L_end:")
a("    s_endpgm")
a('.section .rodata,"a"')
a(".p2align 6")
a(".amdhsa_kernel standalone__grn__sampling_kernel")
a("  .amdhsa_next_free_vgpr 144")
a("  .amdhsa_next_free_sgpr 16")
a("  .amdhsa_accum_offset 144")
a("  .amdhsa_group_segment_fixed_size 0")
a("  .amdhsa_kernarg_size 48")
a("  .amdhsa_user_sgpr_count 2")
a("  .amdhsa_user_sgpr_kernarg_segment_ptr 1")
a("  .amdhsa_system_sgpr_workgroup_id_x 1")
a("  .amdhsa_float_denorm_mode_32 3")
a(".end_amdhsa_kernel")
txt = place_hops("\n".join(l.rstrip() for l in o) + "\n", 2)
txt = txt.replace("    s_cbranch_scc1 L_back1", "    s_cbranch_scc1 L_back1                     ; taken only in the prefetch pass")
txt = txt.replace("    s_cbranch_scc1 L_back2", "    s_cbranch_scc1 L_back2                     ; taken only in the prefetch pass")
open(sys.argv[1], "w").write(txt)
```
